```python
import torch

def _softmax(x, axis=-1):
    return torch.softmax(x, dim=axis)
def _gelu(x):
    return torch.nn.functional.gelu(x, approximate="tanh")
def _silu(x):
    return torch.nn.functional.silu(x)
def _sigmoid(x):
    return torch.sigmoid(x)
def _layernorm(x, axis=-1, eps=1e-5):
    m = x.mean(dim=axis, keepdim=True)
    v = x.var(dim=axis, keepdim=True, unbiased=False)
    return (x - m) / torch.sqrt(v + eps)
def _scatter_add(tgt, idx, src, axis=0):
    return tgt.clone().index_add_(axis, idx, src)
def _segment_sum(src, seg, n):
    out = torch.zeros((n,) + src.shape[1:], dtype=src.dtype)
    return out.index_add_(0, seg, src)
def _pad(x, pw):
    flat = tuple(v for pair in reversed(pw) for v in pair)
    return torch.nn.functional.pad(x, flat)

kernel_name = 'gated_mix__ssm_conv_s5__glu_gated_swiglu__prompt'

def setup_inputs():

    _w = (lambda a: (lambda t: t.to(torch.bfloat16) if t.is_floating_point() else t)(torch.as_tensor(a)))
    def _A_setup():
        B, S, D = 1, 2048, 448
        P = D
        Lambda_re = -0.5 * (lambda _x: torch.exp(torch.as_tensor(_x)))((lambda *s: torch.randn(*s, dtype=torch.bfloat16) * 0.2)(P))
        Lambda_im = (lambda *s: torch.randn(*s, dtype=torch.bfloat16) * 0.4)(P) * 1.0
        B_re = (lambda *s: torch.randn(*s, dtype=torch.bfloat16) * 0.2)(P, D) * (D ** -0.5)
        B_im = (lambda *s: torch.randn(*s, dtype=torch.bfloat16) * 0.2)(P, D) * (D ** -0.5)
        C_re = (lambda *s: torch.randn(*s, dtype=torch.bfloat16) * 0.2)(D, P) * (P ** -0.5)
        C_im = (lambda *s: torch.randn(*s, dtype=torch.bfloat16) * 0.2)(D, P) * (P ** -0.5)
        log_dt = (lambda *s: torch.randn(*s, dtype=torch.bfloat16) * 0.2)(P) * 0.3 - 2.0
        Dskip = (lambda *s: torch.randn(*s, dtype=torch.bfloat16) * 0.05)(D)
        return {
            "x": _w((lambda *s: torch.randn(*s, dtype=torch.bfloat16) * 0.05)(B, S, D)),
            "Lambda_re": _w(Lambda_re),
            "Lambda_im": _w(Lambda_im),
            "B_re": _w(B_re),
            "B_im": _w(B_im),
            "C_re": _w(C_re),
            "C_im": _w(C_im),
            "log_dt": _w(log_dt),
            "Dskip": _w(Dskip),
        }
    _A_in = _A_setup()

    def _B_setup():
        B, S, D, F = 1, 2048, 448, 1792
        return {
            "x": _w((lambda *s: torch.randn(*s, dtype=torch.bfloat16) * 0.05)(B, S, D)),
            "w1": _w((lambda *s: torch.randn(*s, dtype=torch.bfloat16) * 0.8)(D, F) * (2.0 / D) ** 0.5),
            "w3": _w((lambda *s: torch.randn(*s, dtype=torch.bfloat16) * 0.8)(D, F) * (2.0 / D) ** 0.5),
            "w2": _w((lambda *s: torch.randn(*s, dtype=torch.bfloat16) * 0.8)(F, D) * (2.0 / F) ** 0.5),
        }
    _B_in = _B_setup()

    return {
        "A_x": _A_in["x"],
        "A_Lambda_re": _A_in["Lambda_re"],
        "A_Lambda_im": _A_in["Lambda_im"],
        "A_B_re": _A_in["B_re"],
        "A_B_im": _A_in["B_im"],
        "A_C_re": _A_in["C_re"],
        "A_C_im": _A_in["C_im"],
        "A_log_dt": _A_in["log_dt"],
        "A_Dskip": _A_in["Dskip"],
        "B_x": _B_in["x"],
        "B_w1": _B_in["w1"],
        "B_w3": _B_in["w3"],
        "B_w2": _B_in["w2"],
        "gate_w": _w((lambda *s: torch.randn(*s, dtype=torch.bfloat16) * 0.05)(448) * 16.0),
    }

def reference(A_x, A_Lambda_re, A_Lambda_im, A_B_re, A_B_im, A_C_re, A_C_im, A_log_dt, A_Dskip, B_x, B_w1, B_w3, B_w2, gate_w):
    def _A_ref(x, Lambda_re, Lambda_im, B_re, B_im, C_re, C_im, log_dt, Dskip):
        Bsz, L, H = x.shape
        Lam = Lambda_re + 1j * Lambda_im
        Bmat = B_re + 1j * B_im
        Cmat = C_re + 1j * C_im
        dt = torch.exp(log_dt)
        Lam_bar = torch.exp(dt * Lam)
        B_bar = ((Lam_bar - 1.0) / Lam)[:, None] * Bmat
        Bu = torch.einsum("bld,pd->blp", x + 0j, B_bar)
        h = torch.zeros_like(Bu[:, 0, :])
        hs = []
        for t in range(L):
            h = Lam_bar[None, :] * h + Bu[:, t, :]
            hs.append(h)
        hseq = torch.stack(hs, 1)
        y = 2.0 * torch.einsum("blp,dp->bld", hseq, Cmat).real + x * Dskip[None, None, :]
        return y

    def _B_ref(x, w1, w3, w2):
        gate = torch.einsum("bsd,df->bsf", x, w1)
        up = torch.einsum("bsd,df->bsf", x, w3)
        h = _silu(gate) * up
        out = torch.einsum("bsf,fd->bsd", h, w2)
        return out

    x = A_x
    g = _sigmoid((x * gate_w).sum(-1, keepdims=True))
    a = _A_ref(x, A_Lambda_re, A_Lambda_im, A_B_re, A_B_im, A_C_re, A_C_im, A_log_dt, A_Dskip)
    b = _B_ref(x, B_w1, B_w3, B_w2)
    return g * a + (1 - g) * b
```

```python
import re


def V(i, n=1):
    return f"v{i}" if n == 1 else f"v[{i}:{i+n-1}]"


def A(i, n=1):
    return f"a{i}" if n == 1 else f"a[{i}:{i+n-1}]"


def S(i, n=1):
    return f"s{i}" if n == 1 else f"s[{i}:{i+n-1}]"


_R1 = re.compile(r"^-?\|?([vas])(\d+)\|?$")
_R2 = re.compile(r"^-?([vas])\[(\d+):(\d+)\]$")


def regs_of(op):
    if not isinstance(op, str):
        return []
    op = op.strip()
    m = _R1.match(op)
    if m:
        return [m.group(1) + m.group(2)]
    m = _R2.match(op)
    if m:
        return [m.group(1) + str(i) for i in range(int(m.group(2)), int(m.group(3)) + 1)]
    if op in ("vcc", "exec", "m0", "scc"):
        return [op]
    if op in ("vcc_lo", "vcc_hi"):
        return ["vcc"]
    return []


def fmt(op):
    if isinstance(op, int):
        if -16 <= op <= 64:
            return str(op)
        return hex(op & 0xFFFFFFFF)
    if isinstance(op, float):
        import struct
        if op in (0.0, 0.5, -0.5, 1.0, -1.0, 2.0, -2.0, 4.0, -4.0):
            return repr(op)
        return hex(struct.unpack("<I", struct.pack("<f", op))[0])
    return op


TRANS = ("v_exp_f32", "v_log_f32", "v_rcp_f32", "v_rsq_f32", "v_sqrt_f32", "v_sin_f32", "v_cos_f32")


class Asm:
    def __init__(self):
        self.lines = []
        self.reset()
        self.nlabel = 0
        self.tail = []
        self.count = {}

    def reset(self):
        self.idx = 0
        self.lds_q = []
        self.vm_q = []
        self.lds_n = 0
        self.vm_n = 0
        self.valu_w = {}
        self.trans_w = {}
        self.mfma_w = {}
        self.mfma_c = {}
        self.sg_valu_w = {}
        self.m0_w = -100
        self.store_r = {}
        self.exec_valu_w = -100

    def raw(self, text, states=1):
        self.lines.append("    " + text)
        self.idx += states
        k = text.split()[0]
        self.count[k] = self.count.get(k, 0) + 1

    def comment(self, text):
        self.lines.append("    ; " + text)

    def label(self, name):
        self.lines.append(name + ":")

    def newlabel(self, base="L"):
        self.nlabel += 1
        return f"{base}_{self.nlabel}"

    def nop(self, n):
        while n > 0:
            k = min(n, 16)
            self.raw(f"s_nop {k-1}", k)
            n -= k

    def _need(self, last, dist):
        gap = self.idx - last - 1
        if gap < dist:
            self.nop(dist - gap)

    def _wait_mem(self, regs):
        regs = set(regs)
        lg = None
        for pos, (i, rs) in enumerate(self.lds_q):
            if rs & regs:
                lg = pos
        vm = None
        for pos, (i, rs) in enumerate(self.vm_q):
            if rs & regs:
                vm = pos
        self._emit_wait(vm, lg)

    def _emit_wait(self, vm, lg):
        parts = []
        if vm is not None:
            n = len(self.vm_q) - vm - 1
            n = min(n, 63)
            parts.append(f"vmcnt({n})")
            self.vm_q = self.vm_q[len(self.vm_q) - n:] if n else []
        if lg is not None:
            n = len(self.lds_q) - lg - 1
            n = min(n, 15)
            parts.append(f"lgkmcnt({n})")
            self.lds_q = self.lds_q[len(self.lds_q) - n:] if n else []
        if parts:
            self.raw("s_waitcnt " + " ".join(parts))

    def wait_vm(self, tok):
        for pos, (i, rs) in enumerate(self.vm_q):
            if i == tok:
                self._emit_wait(pos, None)
                return

    def wait_lds(self, tok):
        for pos, (i, rs) in enumerate(self.lds_q):
            if i == tok:
                self._emit_wait(None, pos)
                return

    def wait_all(self, vm=True, lg=True):
        parts = []
        if vm:
            parts.append("vmcnt(0)")
            self.vm_q = []
        if lg:
            parts.append("lgkmcnt(0)")
            self.lds_q = []
        self.raw("s_waitcnt " + " ".join(parts))

    def _mfma_dep(self, regs, dist=12):
        for r in regs:
            if r in self.mfma_w:
                self._need(self.mfma_w[r], dist)

    def valu(self, op, dst, *srcs, mods="", rmw=False, dst2=None):
        d = regs_of(dst) + (regs_of(dst2) if dst2 else [])
        s = []
        for x in srcs:
            s += regs_of(x)
        if rmw or op.startswith("v_fmac") or op.startswith("v_dot2c") or op.startswith("v_permlane"):
            s += d
        if op.startswith("v_permlane"):
            d = d + s
        if op.startswith("v_cndmask") and len(srcs) == 2:
            s.append("vcc")
        self._wait_mem(d + s)
        self._mfma_dep(d + s)
        for r in d:
            if r in self.mfma_c:
                self._need(self.mfma_c[r], 7)
            if r in self.store_r:
                self._need(self.store_r[r], 2)
        base = op.replace("_e32", "").replace("_e64", "").replace("_dpp", "")
        is_trans = base in TRANS
        is_dpp = "_dpp" in op or op.startswith("v_permlane")
        is_rl = op.startswith("v_readfirstlane") or op.startswith("v_readlane")
        for r in s:
            if r in self.trans_w:
                self._need(self.trans_w[r], 1)
            if r in self.sg_valu_w:
                self._need(self.sg_valu_w[r], 2)
            if is_dpp and r in self.valu_w:
                self._need(self.valu_w[r], 2)
            if is_rl and r in self.valu_w:
                self._need(self.valu_w[r], 1)
        ops = [fmt(dst)] + ([fmt(dst2)] if dst2 else []) + [fmt(x) for x in srcs]
        if op.startswith("v_cndmask") and len(srcs) == 2:
            ops.append("vcc")
        self.raw(f"{op} " + ", ".join(ops) + (" " + mods if mods else ""))
        me = self.idx - 1
        for r in d:
            if r[0] in "va" and r != "vcc":
                self.valu_w[r] = me
                if is_trans:
                    self.trans_w[r] = me
                else:
                    self.trans_w.pop(r, None)
                self.mfma_w.pop(r, None)
            else:
                self.sg_valu_w[r] = me

    def salu(self, op, *ops):
        self.raw(f"{op} " + ", ".join(fmt(x) for x in ops))
        if ops and ops[0] == "m0":
            self.m0_w = self.idx - 1
        if ops:
            for r in regs_of(ops[0]):
                self.sg_valu_w.pop(r, None)

    def mfma(self, d, a, b, c, op="v_mfma_f32_32x32x16_bf16"):
        dr, ar, br, cr = regs_of(d), regs_of(a), regs_of(b), regs_of(c)
        self._wait_mem(dr + ar + br + cr)
        self._mfma_dep(ar + br)
        if cr and c != d:
            self._mfma_dep(cr, 10)
        if not cr:
            pass
        for r in ar + br + cr:
            if r in self.valu_w:
                self._need(self.valu_w[r], 2)
        self.raw(f"{op} {d}, {a}, {b}, {fmt(c)}")
        me = self.idx - 1
        for r in dr:
            self.mfma_w[r] = me
            self.valu_w.pop(r, None)
        for r in cr:
            self.mfma_c[r] = me

    def ds_read(self, op, dst, addr, offset=0):
        assert 0 <= offset < 65536, offset
        d, s = regs_of(dst), regs_of(addr)
        self._wait_mem(d + s)
        self._mfma_dep(d + s)
        for r in d:
            if r in self.store_r:
                self._need(self.store_r[r], 1)
        self.raw(f"{op} {dst}, {addr}" + (f" offset:{offset}" if offset else ""))
        self.lds_n += 1
        self.lds_q.append((self.lds_n, set(d)))
        return self.lds_n

    def ds_write(self, op, addr, data, offset=0):
        assert 0 <= offset < 65536, offset
        s = regs_of(addr) + regs_of(data)
        self._wait_mem(s)
        self._mfma_dep(s)
        self.raw(f"{op} {addr}, {data}" + (f" offset:{offset}" if offset else ""))
        self.lds_n += 1
        self.lds_q.append((self.lds_n, set()))
        return self.lds_n

    def _vmem_sg(self, regs):
        for r in regs:
            if r in self.sg_valu_w:
                self._need(self.sg_valu_w[r], 5)

    def buf_load(self, op, dst, voff, srd, soff=0, offset=0, flags=""):
        assert 0 <= offset < 4096, offset
        d, s = regs_of(dst), regs_of(voff)
        self._wait_mem(d + s)
        self._mfma_dep(d + s)
        for r in d:
            if r in self.store_r:
                self._need(self.store_r[r], 1)
        self._vmem_sg(regs_of(srd) + regs_of(soff))
        self.raw(f"{op} {dst}, {voff}, {srd}, {fmt(soff)} offen" + (f" offset:{offset}" if offset else "")
                 + (" " + flags if flags else ""))
        self.vm_n += 1
        self.vm_q.append((self.vm_n, set(d)))
        return self.vm_n

    def buf_store(self, op, data, voff, srd, soff=0, offset=0, flags=""):
        assert 0 <= offset < 4096, offset
        s = regs_of(data) + regs_of(voff)
        self._wait_mem(s)
        self._mfma_dep(s)
        self._vmem_sg(regs_of(srd) + regs_of(soff))
        self.raw(f"{op} {data}, {voff}, {srd}, {fmt(soff)} offen" + (f" offset:{offset}" if offset else "")
                 + (" " + flags if flags else ""))
        for r in regs_of(data):
            self.store_r[r] = self.idx - 1
        self.vm_n += 1
        self.vm_q.append((self.vm_n, set()))
        return self.vm_n

    def dma(self, voff, srd, soff=0, offset=0, flags=""):
        assert 0 <= offset < 4096, offset
        s = regs_of(voff)
        self._wait_mem(s)
        self._vmem_sg(regs_of(srd) + regs_of(soff))
        self._need(self.m0_w, 1)
        self.raw(f"buffer_load_dwordx4 {voff}, {srd}, {fmt(soff)} offen" + (f" offset:{offset}" if offset else "")
                 + (" " + flags if flags else "") + " lds")
        self.vm_n += 1
        self.vm_q.append((self.vm_n, set()))
        return self.vm_n

    def vm_other(self, text, dst=None, srcs=()):
        d = regs_of(dst) if dst else []
        s = []
        for x in srcs:
            s += regs_of(x)
        self._wait_mem(d + s)
        self._mfma_dep(d + s)
        self._vmem_sg(s)
        self.raw(text)
        self.vm_n += 1
        self.vm_q.append((self.vm_n, set(d)))
        return self.vm_n

    def barrier(self):
        self.raw("s_barrier")

    def text(self):
        return "\n".join(self.lines) + "\n"
```

```python
import sys, math
from asmlib import *

NAME = "gated_mix__ssm_conv_s5__glu_gated_swiglu__prompt"
CFG = dict(ROUND=1, STAMP=0, PF=1)
for a in sys.argv[2:]:
    k, v = a.split("=")
    CFG[k] = int(v)

WS_A2 = 0
WS_B2 = 0xB00000
WS_AGG = 0xE00000
WS_FLG = 0xE40000
WS_BFL = 0xE42000
WS_G = 0xE44000
WS_EPOCH = 0xE50000
WS_STAMP = 0xE60000
WS_SIZE = 0xF00000
REG = 40960
LOG2E = 1.4426950408889634

sW = "s3"
pX, pLre, pLim, pBre, pBim, pCre, pCim, pLdt = 16, 18, 20, 22, 24, 26, 28, 30
pDsk, pBx, pW1, pW3, pW2, pGw, pOut, pDbg, pWs = 32, 34, 36, 38, 40, 42, 44, 46, 48
srdX, srdS, srdW, srdWS, srdAG, srdOut = S(52, 4), S(56, 4), S(60, 4), S(64, 4), S(68, 4), S(72, 4)
sRb, sCg, sRb64, sCb, sReg, sTag = "s80", "s81", "s82", "s83", "s84", "s85"
sPosF = ["s86", "s87"]
sPosS = ["s88", "s89", "s90", "s91"]
sMaskF, sMaskS, sMaskP = S(92, 2), S(94, 2), S(96, 2)
sT = ["s4", "s5", "s6", "s7", "s8", "s9", "s10", "s11", "s12", "s13", "s14", "s15"]
sSo, sSo2, sSpin, sCnt = "s98", "s99", "s100", "s101"
sEp = "s50"
sStamp = S(76, 2)

k = Asm()


class VAlloc:
    def __init__(self, n, start=0):
        self.free = [True] * n
        for i in range(start):
            self.free[i] = False
        self.hi = start

    def get(self, n=1, align=1):
        for i in range(0, len(self.free) - n + 1, align):
            if all(self.free[i:i + n]):
                for j in range(i, i + n):
                    self.free[j] = False
                self.hi = max(self.hi, i + n)
                return i
        raise RuntimeError("out of regs")

    def put(self, i, n=1):
        for j in range(i, i + n):
            assert not self.free[j]
            self.free[j] = True


def srd(dst, ptr, size):
    b = int(dst[2:].split(":")[0])
    k.salu("s_mov_b32", S(b), S(ptr))
    k.salu("s_mov_b32", S(b + 1), S(ptr + 1))
    k.salu("s_mov_b32", S(b + 2), size)
    k.salu("s_mov_b32", S(b + 3), 0x20000)


def srd_sel(dst, ptr0, ptr1, size):
    b = int(dst[2:].split(":")[0])
    k.salu("s_cselect_b32", S(b), S(ptr1), S(ptr0))
    k.salu("s_cselect_b32", S(b + 1), S(ptr1 + 1), S(ptr0 + 1))
    k.salu("s_mov_b32", S(b + 2), size)
    k.salu("s_mov_b32", S(b + 3), 0x20000)


nstamp = [0]


def stamp(vtmp, vaddr):
    if not CFG["STAMP"]:
        return
    i = nstamp[0]
    nstamp[0] += 1
    k.raw(f"s_memrealtime {sStamp}")
    k.wait_all(vm=False)
    k.valu("v_mov_b32", V(vtmp), "s76")
    k.buf_store("buffer_store_dword", V(vtmp), V(vaddr), srdWS, 0, offset=4 * i)


def cmul(dr, di, ar, ai, br, bi, t):
    k.valu("v_mul_f32", V(t), V(ai), V(bi))
    k.valu("v_mul_f32", V(t + 1), V(ar), V(bi))
    k.valu("v_fma_f32", V(t), V(ar), V(br), "-" + V(t))
    k.valu("v_fma_f32", V(di), V(ai), V(br), V(t + 1))
    k.valu("v_mov_b32", V(dr), V(t))


def spin_block(load_fn, check_fn):
    ls, lr = k.newlabel("SPIN"), k.newlabel("RES")
    check_fn(k)
    k.raw(f"s_cbranch_scc1 {ls}")
    k.label(lr)
    t = Asm()
    t.label(ls)
    t.raw(f"s_mov_b32 {sSpin}, 0")
    t.label(ls + "_l")
    t.raw("s_sleep 1")
    t.nop(4)
    load_fn(t)
    t.wait_all()
    check_fn(t)
    t.raw(f"s_cbranch_scc0 {lr}_x")
    t.raw(f"s_add_u32 {sSpin}, {sSpin}, 1")
    t.raw(f"s_cmp_lt_u32 {sSpin}, 0x40000")
    t.raw(f"s_cbranch_scc1 {ls}_l")
    t.label(lr + "_x")
    t.nop(5)
    t.raw(f"s_branch {lr}")
    k.tail.append(t.text())


va = VAlloc(256, 1)
vLane = va.get()
vL16 = va.get()
vDummy = va.get(4, 4)
vT = va.get(12, 4)

k.label(f"{NAME}_kernel")
k.raw("s_load_dwordx16 s[16:31], s[0:1], 0")
k.raw("s_load_dwordx16 s[32:47], s[0:1], 64")
k.raw("s_load_dwordx2 s[48:49], s[0:1], 128")
k.raw("s_getpc_b64 s[4:5]")
k.label("PCBASE")
k.salu("s_cmp_ge_u32", "s2", 256)
k.raw("s_cbranch_scc1 L_END")
k.valu("v_lshrrev_b32", V(vT), 6, "v0")
k.valu("v_and_b32", V(vLane), 63, "v0")
k.valu("v_readfirstlane_b32", sW, V(vT))
k.valu("v_lshlrev_b32", V(vL16), 4, V(vLane))
if CFG["PF"]:
    k.salu("s_bfe_u32", "s6", "s2", 0x30003)
    k.salu("s_lshl_b32", "s6", "s6", 12)
    k.valu("v_lshl_add_u32", V(vT + 1), "v0", 4, "s6")
    k.vm_other(f"global_load_dwordx4 {V(vDummy,4)}, {V(vT+1)}, s[4:5]", V(vDummy, 4), [V(vT + 1)])
k.salu("s_mul_i32", sReg, sW, REG)
k.salu("s_cmp_lt_u32", "s2", 32)
k.raw("s_cbranch_scc1 L_HELPER")

k.salu("s_sub_u32", "s6", "s2", 32)
k.salu("s_and_b32", "s7", "s6", 7)
k.salu("s_lshr_b32", "s8", "s6", 3)
k.salu("s_lshr_b32", "s9", "s7", 1)
k.salu("s_mul_i32", "s9", "s9", 28)
k.salu("s_add_u32", "s9", "s9", "s8")
k.salu("s_lshr_b32", sCg, "s9", 3)
k.salu("s_and_b32", "s9", "s9", 7)
k.salu("s_and_b32", "s10", "s7", 1)
k.salu("s_lshl_b32", "s10", "s10", 3)
k.salu("s_add_u32", sRb, "s9", "s10")
voffX = va.get(4)
voffS = va.get(2)
k.valu("v_lshrrev_b32", V(vT), 4, V(vLane))
k.valu("v_and_b32", V(vT + 1), 7, V(vLane))
k.valu("v_xor_b32", V(vT), V(vT), V(vT + 1))
k.valu("v_lshlrev_b32", V(vT), 4, V(vT))
k.valu("v_bfe_u32", V(vT + 1), V(vLane), 3, 2)
k.valu("v_lshrrev_b32", V(vT + 2), 5, V(vLane))
k.valu("v_lshl_add_u32", V(vT + 1), V(vT + 2), 4, V(vT + 1))
k.salu("s_lshl_b32", "s9", sRb, 7)
k.salu("s_lshl_b32", "s10", sW, 5)
k.salu("s_add_u32", "s9", "s9", "s10")
k.valu("v_add_u32", V(vT + 1), "s9", V(vT + 1))
k.valu("v_mul_u32_u24", V(vT + 1), 896, V(vT + 1))
k.valu("v_add_u32", V(voffX), V(vT + 1), V(vT))
k.valu("v_xor_b32", V(vT + 2), 64, V(voffX))
k.valu("v_add_u32", V(voffX + 1), 2560, V(vT + 2))
k.valu("v_add_u32", V(voffX + 2), 5120, V(voffX))
k.valu("v_add_u32", V(voffX + 3), 7680, V(vT + 2))
k.salu("s_and_b32", "s10", sW, 1)
k.salu("s_lshl_b32", "s10", "s10", 4)
k.salu("s_lshl_b32", "s11", sCg, 5)
k.salu("s_add_u32", "s10", "s10", "s11")
k.valu("v_lshrrev_b32", V(vT + 1), 3, V(vLane))
k.valu("v_add_u32", V(vT + 1), "s10", V(vT + 1))
k.valu("v_mul_u32_u24", V(vT + 1), 896, V(vT + 1))
k.valu("v_add_u32", V(voffS), V(vT + 1), V(vT))
k.valu("v_xor_b32", V(vT + 2), 64, V(voffS))
k.valu("v_add_u32", V(voffS + 1), 8 * 896 - 1024, V(vT + 2))
k.raw("s_waitcnt lgkmcnt(0)")
srd(srdX, pX, 2048 * 896)
k.salu("s_cmp_ge_u32", sW, 2)
srd_sel(srdS, pBre, pBim, 448 * 896)

tokX, tokS, tokFA, tokFB = {}, {}, {}, {}
offX = {c: 4096 * c for c in range(7)}
offS = {c: 28672 + 2048 * c for c in range(6)}
offS[6] = 0
OFF_MISC = 2048
offFA = {c: 4096 * (c + 1) for c in range(6)}
offFA[6] = 28672
offFB = {0: 32768, 1: 36864}
for c in range(2, 7):
    offFB[c] = offFA[c - 2]


def dma_X(c):
    k.salu("s_add_u32", "m0", sReg, offX[c])
    k.salu("s_movk_i32", sSo, 128 * c)
    for i in range(4):
        tokX[c] = k.dma(V(voffX + i), srdX, sSo, offset=1024 * i)


def dma_S(c):
    k.salu("s_add_u32", "m0", sReg, offS[c])
    k.salu("s_movk_i32", sSo, 128 * c)
    for i in range(2):
        tokS[c] = k.dma(V(voffS + i), srdS, sSo, offset=1024 * i)


voffF = va.get(4)


def dma_F(hf, c):
    off = (offFA, offFB)[hf][c]
    k.salu("s_add_u32", "m0", sReg, off)
    k.salu("s_mov_b32", sSo, c * 64 * 3584 + hf * 128)
    for i in range(4):
        (tokFA, tokFB)[hf][c] = k.dma(V(voffF + i), srdW, sSo, offset=1024 * i)


dma_X(0)
dma_S(0)
vLr, vLi, vDt = va.get(), va.get(), va.get()
k.valu("v_and_b32", V(vT), 31, V(vLane))
k.valu("v_add_u32", V(vT), "s11", V(vT))
k.valu("v_lshlrev_b32", V(vT), 1, V(vT))
k.vm_other(f"global_load_ushort {V(vLr)}, {V(vT)}, s[{pLre}:{pLre+1}]", V(vLr), [V(vT)])
k.vm_other(f"global_load_ushort {V(vLi)}, {V(vT)}, s[{pLim}:{pLim+1}]", V(vLi), [V(vT)])
k.vm_other(f"global_load_ushort {V(vDt)}, {V(vT)}, s[{pLdt}:{pLdt+1}]", V(vDt), [V(vT)])
k.salu("s_add_u32", "s12", S(pWs), WS_EPOCH)
k.salu("s_addc_u32", "s13", S(pWs + 1), 0)
k.raw(f"s_load_dword {sEp}, s[12:13], 0")
dma_X(1)
dma_S(1)
k.salu("s_mul_i32", "s9", "s8", 37)
k.salu("s_lshr_b32", "s9", "s9", 8)
k.salu("s_mul_i32", "s10", "s9", 7)
k.salu("s_sub_u32", sCb, "s8", "s10")
k.salu("s_lshl_b32", "s10", "s7", 2)
k.salu("s_add_u32", sRb64, "s10", "s9")
k.salu("s_cmp_ge_u32", sW, 2)
srd_sel(srdW, pW1, pW3, 448 * 3584)
srd(srdWS, pWs, WS_SIZE)
dma_X(2)
dma_S(2)
k.valu("v_bfe_u32", V(vT), V(vLane), 4, 1)
k.valu("v_lshlrev_b32", V(vT), 2, V(vT))
k.valu("v_and_b32", V(vT + 1), 7, V(vLane))
k.valu("v_xor_b32", V(vT), V(vT), V(vT + 1))
k.valu("v_lshlrev_b32", V(vT), 4, V(vT))
k.salu("s_and_b32", "s10", sW, 1)
k.salu("s_lshl_b32", "s10", "s10", 5)
k.valu("v_lshrrev_b32", V(vT + 1), 3, V(vLane))
k.valu("v_add_u32", V(vT + 1), "s10", V(vT + 1))
k.valu("v_mul_u32_u24", V(vT + 1), 3584, V(vT + 1))
k.salu("s_lshl_b32", "s10", sCg, 8)
k.valu("v_add3_u32", V(voffF), V(vT), V(vT + 1), "s10")
for i in range(1, 4):
    k.valu("v_add_u32", V(voffF + i), i * (8 * 3584 - 1024), V(voffF))
dma_X(3)
dma_S(3)
vXr = va.get(4)
vSr = va.get(8)
vFr = va.get(4)
k.valu("v_bfe_u32", V(vT), V(vLane), 1, 3)
k.valu("v_lshrrev_b32", V(vT + 1), 5, V(vLane))
k.valu("v_xor_b32", V(vT), V(vT), V(vT + 1))
k.valu("v_lshlrev_b32", V(vT), 4, V(vT))
k.valu("v_and_b32", V(vT + 1), 31, V(vLane))
k.valu("v_lshl_add_u32", V(vT + 2), V(vT + 1), 7, V(vT))
k.valu("v_add_u32", V(vXr), sReg, V(vT + 2))
for ks in range(1, 4):
    k.valu("v_xor_b32", V(vXr + ks), 32 * ks, V(vXr))
k.valu("v_and_b32", V(vT + 1), 15, V(vLane))
k.valu("v_lshl_add_u32", V(vT + 2), V(vT + 1), 7, V(vT))
k.valu("v_bfe_u32", V(vT + 1), V(vLane), 4, 1)
k.valu("v_mul_u32_u24", V(vT + 1), REG, V(vT + 1))
k.valu("v_add_u32", V(vSr), V(vT + 1), V(vT + 2))
for ks in range(1, 4):
    k.valu("v_xor_b32", V(vSr + ks), 32 * ks, V(vSr))
for ks in range(4):
    k.valu("v_add_u32", V(vSr + 4 + ks), 2 * REG, V(vSr + ks))
dma_X(4)
dma_S(4)
k.valu("v_lshrrev_b32", V(vT), 5, V(vLane))
k.valu("v_bfe_u32", V(vT + 1), V(vLane), 2, 2)
k.valu("v_lshl_add_u32", V(vT), V(vT), 3, V(vT + 1))
k.valu("v_lshlrev_b32", V(vT), 7, V(vT))
k.valu("v_bfe_u32", V(vT + 1), V(vLane), 3, 1)
k.valu("v_lshl_add_u32", V(vT), V(vT + 1), 6, V(vT))
k.valu("v_bfe_u32", V(vT + 1), V(vLane), 4, 1)
k.valu("v_lshl_add_u32", V(vT), V(vT + 1), 5, V(vT))
k.valu("v_and_b32", V(vT + 1), 3, V(vLane))
k.valu("v_lshl_add_u32", V(vFr), V(vT + 1), 3, V(vT))
for r in range(1, 4):
    k.valu("v_add_u32", V(vFr + r), r * REG, V(vFr))
dma_X(5)
dma_S(5)
dma_X(6)

vA2w = va.get()
k.salu("s_lshl_b32", "s9", sRb, 1)
k.salu("s_lshr_b32", "s10", sW, 1)
k.salu("s_add_u32", "s9", "s9", "s10")
k.salu("s_mul_i32", "s10", "s9", 168 * 2048)
k.salu("s_and_b32", "s11", sW, 1)
k.salu("s_lshl_b32", "s12", "s11", 10)
k.salu("s_add_u32", "s10", "s10", "s12")
k.valu("v_add_u32", V(vA2w), "s10", V(vL16))
vFlgW = va.get()
k.salu("s_lshl_b32", "s9", "s9", 7)
k.salu("s_lshl_b32", "s11", "s11", 6)
k.salu("s_add_u32", "s9", "s9", "s11")
k.salu("s_lshl_b32", "s11", sCg, 2)
k.salu("s_add_u32", "s9", "s9", "s11")
k.salu("s_add_u32", "s9", "s9", WS_FLG)
k.valu("v_mov_b32", V(vFlgW), "s9")
for s in range(2):
    k.salu("s_lshl_b32", "s9", sCg, 1)
    k.salu("s_add_u32", "s9", "s9", s)
    k.salu("s_mul_i32", "s10", "s9", 37)
    k.salu("s_lshr_b32", "s10", "s10", 8)
    k.salu("s_mul_i32", "s10", "s10", 35)
    k.salu("s_add_u32", "s10", "s10", "s9")
    k.salu("s_add_u32", "s10", "s10", 14)
    k.salu("s_lshl_b32", sPosF[s], "s10", 11)
    k.salu("s_cmp_ge_u32", "s9", 14)
    k.salu("s_cselect_b32", "s10", 28, 0)
    k.salu("s_add_u32", "s10", "s10", "s9")
    k.salu("s_lshl_b32", sPosS[s], "s10", 11)
    k.salu("s_add_u32", sPosS[2 + s], sPosS[s], 84 * 2048)

vNLi = va.get()
vCr, vCi = va.get(), va.get()
vL16r, vL16i = va.get(), va.get()
vL128r, vL128i = va.get(), va.get()
vL256r, vL256i = va.get(), va.get()
vLsr, vLsi = va.get(), va.get()
vSeg = va.get()
t0, t1, t2, t3, t4, t5, t6, t7 = [vT + i for i in range(8)]
k.valu("v_lshlrev_b32", V(vLr), 16, V(vLr))
k.valu("v_lshlrev_b32", V(vLi), 16, V(vLi))
k.valu("v_lshlrev_b32", V(vDt), 16, V(vDt))
k.valu("v_mul_f32", V(vDt), LOG2E, V(vDt))
k.valu("v_exp_f32", V(vDt), V(vDt))
k.valu("v_cvt_pk_bf16_f32", V(vDt), 0, V(vDt))
k.valu("v_mul_f32", V(t0), V(vDt), V(vLr))
k.valu("v_mul_f32", V(t1), V(vDt), V(vLi))
k.valu("v_mul_f32", V(t0), LOG2E, V(t0))
k.valu("v_exp_f32", V(t0), V(t0))
k.valu("v_mul_f32", V(t1), 0.15915494309189535, V(t1))
k.valu("v_rndne_f32", V(t2), V(t1))
k.valu("v_sub_f32", V(t1), V(t1), V(t2))
k.valu("v_cos_f32", V(t2), V(t1))
k.valu("v_sin_f32", V(t3), V(t1))
k.valu("v_mul_f32", V(t2), V(t0), V(t2))
k.valu("v_mul_f32", V(t3), V(t0), V(t3))
k.valu("v_add_f32", V(t4), -1.0, V(t2))
k.valu("v_mul_f32", V(t5), V(vLr), V(vLr))
k.valu("v_fmac_f32", V(t5), V(vLi), V(vLi))
k.valu("v_rcp_f32", V(t5), V(t5))
k.valu("v_mul_f32", V(t6), V(t4), V(vLr))
k.valu("v_fmac_f32", V(t6), V(t3), V(vLi))
k.valu("v_mul_f32", V(t7), V(t3), V(vLr))
k.valu("v_fma_f32", V(t7), "-" + V(t4), V(vLi), V(t7))
k.valu("v_add_f32", V(t5), V(t5), V(t5))
k.valu("v_mul_f32", V(vCr), V(t6), V(t5))
k.valu("v_mul_f32", V(vCi), V(t7), V(t5))
k.valu("v_mov_b32", V(vLr), V(t2))
k.valu("v_mov_b32", V(vLi), V(t3))
k.valu("v_sub_f32", V(vNLi), 0, V(t3))


def csq(dr, di, ar, ai):
    k.valu("v_mul_f32", V(t6), V(ai), V(ai))
    k.valu("v_mul_f32", V(t7), V(ar), V(ai))
    k.valu("v_fma_f32", V(dr), V(ar), V(ar), "-" + V(t6))
    k.valu("v_add_f32", V(di), V(t7), V(t7))


csq(t0, t1, vLr, vLi)
csq(t0, t1, t0, t1)
csq(t0, t1, t0, t1)
csq(vL16r, vL16i, t0, t1)
csq(t0, t1, vL16r, vL16i)
csq(t2, t3, t0, t1)
csq(vL128r, vL128i, t2, t3)
csq(vL256r, vL256i, vL128r, vL128i)
k.valu("v_lshrrev_b32", V(vSeg), 5, "v0")
k.valu("v_cmp_lt_u32", "vcc", 31, V(vLane))
k.valu("v_cndmask_b32", V(vLsr), 1.0, V(vL16r))
k.valu("v_cndmask_b32", V(vLsi), 0, V(vL16i))
k.valu("v_and_b32", V(t4), 2, V(vSeg))
k.valu("v_cmp_ne_u32", "vcc", 0, V(t4))
k.valu("v_cndmask_b32", V(t0), 1.0, V(t0))
k.valu("v_cndmask_b32", V(t1), 0, V(t1))
cmul(vLsr, vLsi, vLsr, vLsi, t0, t1, t6)
k.valu("v_and_b32", V(t4), 4, V(vSeg))
k.valu("v_cmp_ne_u32", "vcc", 0, V(t4))
k.valu("v_cndmask_b32", V(t2), 1.0, V(t2))
k.valu("v_cndmask_b32", V(t3), 0, V(t3))
cmul(vLsr, vLsi, vLsr, vLsi, t2, t3, t6)
va.put(vDt)
k.raw("s_waitcnt lgkmcnt(0)")
k.salu("s_lshr_b32", sTag, sEp, 3)
k.salu("s_add_u32", sTag, sTag, 1)
k.salu("s_lshl_b32", sTag, sTag, 3)
k.salu("s_lshl_b32", "s9", sCg, 13)
k.salu("s_add_u32", "s9", "s9", WS_AGG)
k.salu("s_add_u32", "s68", S(pWs), "s9")
k.salu("s_addc_u32", "s69", S(pWs + 1), 0)
k.salu("s_mov_b32", "s70", 8192)
k.salu("s_mov_b32", "s71", 0x20000)
srd(srdOut, pOut, 2048 * 448 * 4)
k.salu("s_mul_i32", "s9", sW, 7)
k.salu("s_lshr_b32", "s9", "s9", 1)
k.salu("s_lshl_b32", "s92", 0x000F000F, "s9")
k.salu("s_mov_b32", "s93", 0)
k.salu("s_and_b32", "s9", sW, 1)
k.salu("s_mul_i32", "s9", "s9", 7)
k.salu("s_lshl_b32", "s94", 0x007F007F, "s9")
k.salu("s_mov_b32", "s95", 0)
k.salu("s_lshl_b32", "s9", sW, 3)
k.salu("s_lshl_b32", "s96", 0xFF, "s9")
k.salu("s_mov_b32", "s97", 0)
vStampA = None
if CFG["STAMP"]:
    vStampA = va.get()
    vStampT = va.get()
    k.salu("s_lshl_b32", "s9", "s2", 2)
    k.salu("s_add_u32", "s9", "s9", sW)
    k.salu("s_lshl_b32", "s9", "s9", 7)
    k.salu("s_add_u32", "s9", "s9", WS_STAMP)
    k.valu("v_mov_b32", V(vStampA), "s9")
    stamp(vStampT, vStampA)


def STAMP():
    if CFG["STAMP"]:
        stamp(vStampT, vStampA)


accU = va.get(32, 4)
accA = va.get(32, 4)
accB = va.get(32, 4)
vW = va.get(24, 4)
vH = va.get(8, 4)
vE = va.get(16, 4)
vP = va.get(2)
XA = 0


def wbuf(n, m):
    return vW + (n % 3) * 8 + 4 * m


def reads_for(n):
    ps, kk = divmod(n, 28)
    c, ks = divmod(kk, 4)
    out = []
    if ps == 0:
        out.append(lambda: xread(c, ks))
        for m in range(2):
            out.append(lambda m=m: k.ds_read("ds_read_b128", V(wbuf(n, m), 4), V(vSr + 4 * m + ks), offS[c]))
    else:
        off = (offFA, offFB)[(ps - 1) // 2][c]
        for m in range(2):
            for q in range(2):
                out.append(lambda m=m, q=q: k.ds_read(
                    "ds_read_b64_tr_b16", V(wbuf(n, m) + 2 * q, 2), V(vFr + 2 * m + (ks >> 1)),
                    off + (ks & 1) * 2048 + q * 512))
    return out


tokXr = {}


def xread(c, ks):
    if ks == 0:
        k.wait_vm(tokX[c])
    tokXr[(c, ks)] = k.ds_read("ds_read_b128", A(XA + 16 * c + 4 * ks, 4), V(vXr + ks), offX[c])


def sync_for(n):
    ps, kk = divmod(n, 28)
    c = kk // 4
    if ps == 0:
        k.wait_vm(tokS[c])
    elif ps == 1:
        k.wait_vm(tokFA[c])
    elif ps == 3:
        k.wait_vm(tokFB[c])
    for f in pre_barrier.pop(n, []):
        f()
    k.barrier()
    for f in post_barrier.pop(n, []):
        f()


pre_barrier, post_barrier = {}, {}
fill = {}


def spread(items, n0, n1):
    slots = list(range(2 * n0, 2 * n1))
    tot = sum(c for c, f in items)
    acc = 0
    for c, f in items:
        s = slots[min(len(slots) - 1, int(acc * len(slots) / tot))]
        fill.setdefault(s, []).append(f)
        acc += c


def I(fn, *a, cost=1, **kw):
    return (cost, lambda: fn(*a, **kw))


pending = []
vFlgV = va.get()


def publish(progress):
    k.salu("s_add_u32", "s12", sTag, progress)
    k.valu("v_mov_b32", V(vFlgV), "s12")
    k.raw("s_mov_b64 exec, 1")
    k.buf_store("buffer_store_dword", V(vFlgV), V(vFlgW), srdWS, 0, flags="sc1")
    k.raw("s_mov_b64 exec, -1")


def run_pending(force=False):
    while pending:
        tok, fn = pending[0]
        if force:
            k.wait_vm(tok)
        if any(i <= tok for i, _ in k.vm_q):
            return
        pending.pop(0)
        fn()


def ffn_epilogue(acc, st, progress):
    G, U = acc, acc + 16
    items = []
    T = vT
    for r0 in range(0, 16, 4):
        rs = range(r0, r0 + 4)
        if CFG["ROUND"]:
            for r in rs:
                items.append(I(k.valu, "v_cvt_pk_bf16_f32", V(G + r), 0, V(G + r)))
        for j, r in enumerate(rs):
            items.append(I(k.valu, "v_mul_f32", V(T + j), -LOG2E, V(G + r)))
        for j, r in enumerate(rs):
            items.append(I(k.valu, "v_exp_f32", V(T + j), V(T + j), cost=2))
        if CFG["ROUND"]:
            for r in rs:
                items.append(I(k.valu, "v_cvt_pk_bf16_f32", V(U + r), 0, V(U + r)))
        for j, r in enumerate(rs):
            items.append(I(k.valu, "v_add_f32", V(T + j), 1.0, V(T + j)))
        for j, r in enumerate(rs):
            items.append(I(k.valu, "v_rcp_f32", V(T + j), V(T + j), cost=2))
        if not CFG["ROUND"]:
            for j, r in enumerate(rs):
                items.append(I(k.valu, "v_mul_f32", V(G + r), V(G + r), V(U + r)))
        for j, r in enumerate(rs):
            items.append(I(k.valu, "v_mul_f32", V(G + r), V(G + r), V(T + j)))
        if CFG["ROUND"]:
            for r in rs:
                items.append(I(k.valu, "v_cvt_pk_bf16_f32", V(G + r), 0, V(G + r)))
            for r in rs:
                items.append(I(k.valu, "v_mul_f32", V(G + r), V(G + r), V(U + r)))
        for r in (r0, r0 + 2):
            items.append(I(k.valu, "v_cvt_pk_bf16_f32", V(vH + r // 2), V(G + r), V(G + r + 1)))
        if r0 in (4, 12):
            s = r0 // 8

            def st_fn(s=s):
                k.salu("s_add_u32", sSo2, sPosF[s], st * 7 * 2048)
                tok = k.buf_store("buffer_store_dwordx4", V(vH + 4 * s, 4), V(vA2w), srdWS, sSo2, flags="sc1")
                if s == 1:
                    pending.append((tok, lambda: publish(progress)))
            items.append((2, st_fn))
    return items


Ure, Uim = accU, accU + 16
vMw = va.get()
vMr = va.get(2)


def ssm_s1():
    it = []
    it.append(I(k.valu, "v_lshlrev_b32", V(vMw), 3, V(vLane)))
    it.append(I(k.valu, "v_add_u32", V(vMw), sReg, V(vMw)))
    it.append(I(k.valu, "v_and_b32", V(vMr), 31, V(vLane)))
    it.append(I(k.valu, "v_lshlrev_b32", V(vMr), 3, V(vMr)))
    it.append(I(k.valu, "v_add_u32", V(vMr + 1), 2 * REG, V(vMr)))
    a, b = (vT + 4, vT + 5), (vT + 6, vT + 7)
    cur = (Ure, Uim)
    for r in range(1, 16):
        nx = a if r % 2 else b
        it.append(I(k.valu, "v_fma_f32", V(nx[0]), V(vLr), V(cur[0]), V(Ure + r)))
        it.append(I(k.valu, "v_fma_f32", V(nx[1]), V(vLr), V(cur[1]), V(Uim + r)))
        it.append(I(k.valu, "v_fmac_f32", V(nx[0]), V(vNLi), V(cur[1])))
        it.append(I(k.valu, "v_fmac_f32", V(nx[1]), V(vLi), V(cur[0])))
        cur = nx
    it.append(I(k.valu, "v_mul_f32", V(vT + 8), V(vCr), V(cur[0])))
    it.append(I(k.valu, "v_mul_f32", V(vT + 9), V(vCr), V(cur[1])))
    it.append(I(k.valu, "v_fma_f32", V(vT + 8), "-" + V(vCi), V(cur[1]), V(vT + 8)))
    it.append(I(k.valu, "v_fmac_f32", V(vT + 9), V(vCi), V(cur[0])))

    def wr():
        tk["agg"] = k.ds_write("ds_write_b64", V(vMw), V(vT + 8, 2), OFF_MISC)
    it.append((1, wr))
    return it


tk = {}


def read8(off):
    it = []
    for u in range(8):
        w, hh = u >> 1, u & 1
        it.append(I(k.ds_read, "ds_read_b64", V(vE + 2 * u, 2), V(vMr + (w >> 1)), (w & 1) * REG + off + hh * 256))
    return it


vAgA = va.get(2)
vAgD = va.get(8, 4)


def ssm_s2():
    it = read8(OFF_MISC)
    a, b = (vT + 4, vT + 5), (vT + 6, vT + 7)
    it.append(I(k.valu, "v_mov_b32", V(vP), 0))
    it.append(I(k.valu, "v_mov_b32", V(vP + 1), 0))
    cur = (vE, vE + 1)
    for s in range(1, 8):
        it.append(I(k.valu, "v_cmp_eq_u32", "vcc", s, V(vSeg)))
        nx = a if s % 2 else b
        it.append(I(k.valu, "v_fma_f32", V(nx[0]), V(vL16r), V(cur[0]), V(vE + 2 * s)))
        it.append(I(k.valu, "v_fma_f32", V(nx[1]), V(vL16r), V(cur[1]), V(vE + 2 * s + 1)))
        it.append(I(k.valu, "v_cndmask_b32", V(vP), V(vP), V(cur[0])))
        it.append(I(k.valu, "v_cndmask_b32", V(vP + 1), V(vP + 1), V(cur[1])))
        it.append(I(k.valu, "v_fma_f32", V(nx[0]), "-" + V(vL16i), V(cur[1]), V(nx[0])))
        it.append(I(k.valu, "v_fmac_f32", V(nx[1]), V(vL16i), V(cur[0])))
        cur = nx
    it.append(I(k.valu, "v_mov_b32", V(vAgD), V(cur[0])))
    it.append(I(k.valu, "v_mov_b32", V(vAgD + 1), sTag))
    it.append(I(k.valu, "v_mov_b32", V(vAgD + 2), V(cur[1])))
    it.append(I(k.valu, "v_mov_b32", V(vAgD + 3), sTag))

    def pub():
        k.salu("s_lshl_b32", "s9", sRb, 9)
        k.raw(f"s_mov_b64 exec, {sMaskP}")
        k.buf_store("buffer_store_dwordx4", V(vAgD, 4), V(vL16), srdAG, "s9", flags="sc1")
        k.raw("s_mov_b64 exec, -1")
    it.append((3, pub))
    it.append(I(k.salu, "s_sub_u32", "s10", sRb, 16))
    it.append(I(k.valu, "v_lshl_add_u32", V(vAgA), V(vSeg), 1, "s10"))
    it.append(I(k.valu, "v_lshlrev_b32", V(vAgA), 9, V(vAgA)))
    it.append(I(k.valu, "v_lshl_add_u32", V(vAgA), V(vMr), 1, V(vAgA)))
    it.append(I(k.valu, "v_add_u32", V(vAgA + 1), 512, V(vAgA)))
    return it


def ssm_scale():
    it = []
    t = vT + 8
    for r in range(16):
        tt = t + (r & 1)
        it.append(I(k.valu, "v_mul_f32", V(tt), V(vCi), V(Ure + r)))
        it.append(I(k.valu, "v_mul_f32", V(Ure + r), V(vCr), V(Ure + r)))
        it.append(I(k.valu, "v_fma_f32", V(Ure + r), "-" + V(vCi), V(Uim + r), V(Ure + r)))
        it.append(I(k.valu, "v_fma_f32", V(Uim + r), V(vCr), V(Uim + r), V(tt)))
    return it


def agg_load(o):
    for j in range(2):
        o.buf_load("buffer_load_dwordx4", V(vAgD + 4 * j, 4), V(vAgA + j), srdAG, 0, flags="sc1")


def agg_check(o):
    a, b = vT + 10, vT + 11
    o.valu("v_mov_b32", V(b), sTag)
    o.valu("v_cmp_le_i32", "vcc", 0, V(vAgA))
    o.valu("v_cndmask_b32", V(a), 0, V(b))
    o.valu("v_cmp_le_i32", "vcc", 0, V(vAgA + 1))
    o.valu("v_cndmask_b32", V(b), 0, V(b))
    o.valu("v_xor_b32", V(vAgD + 1), V(vAgD + 1), V(a))
    o.valu("v_xor_b32", V(vAgD + 3), V(vAgD + 3), V(a))
    o.valu("v_xor_b32", V(vAgD + 5), V(vAgD + 5), V(b))
    o.valu("v_xor_b32", V(vAgD + 7), V(vAgD + 7), V(b))
    o.valu("v_or3_b32", V(a), V(vAgD + 1), V(vAgD + 3), V(vAgD + 5))
    o.valu("v_or_b32", V(a), V(a), V(vAgD + 7))
    o.valu("v_cmp_ne_u32", "vcc", 0, V(a))
    o.nop(1)
    o.raw("s_cmp_lg_u64 vcc, 0")


def ssm_s3b():
    it = [(12, lambda: spin_block(agg_load, agg_check))]
    a = vT + 8
    it.append(I(k.valu, "v_fma_f32", V(a), V(vL128r), V(vAgD), V(vAgD + 4)))
    it.append(I(k.valu, "v_fma_f32", V(a + 1), V(vL128r), V(vAgD + 2), V(vAgD + 6)))
    it.append(I(k.valu, "v_fma_f32", V(a), "-" + V(vL128i), V(vAgD + 2), V(a)))
    it.append(I(k.valu, "v_fmac_f32", V(a + 1), V(vL128i), V(vAgD)))

    def wr():
        tk["part"] = k.ds_write("ds_write_b64", V(vMw), V(a, 2), OFF_MISC + 512)
    it.append((1, wr))
    return it


vTw = va.get()
vTr = va.get()


def ssm_s4(progress):
    it = read8(OFF_MISC + 512)
    a, b = (vT + 8, vT + 9), (vT + 10, vT + 11)
    cur = (vE, vE + 1)
    for u in range(1, 8):
        nx = a if u % 2 else b
        it.append(I(k.valu, "v_fma_f32", V(nx[0]), V(vL256r), V(cur[0]), V(vE + 2 * u)))
        it.append(I(k.valu, "v_fma_f32", V(nx[1]), V(vL256r), V(cur[1]), V(vE + 2 * u + 1)))
        it.append(I(k.valu, "v_fma_f32", V(nx[0]), "-" + V(vL256i), V(cur[1]), V(nx[0])))
        it.append(I(k.valu, "v_fmac_f32", V(nx[1]), V(vL256i), V(cur[0])))
        cur = nx
    it.append(I(k.valu, "v_fmac_f32", V(vP), V(vLsr), V(cur[0])))
    it.append(I(k.valu, "v_fmac_f32", V(vP + 1), V(vLsr), V(cur[1])))
    it.append(I(k.valu, "v_fma_f32", V(vP), "-" + V(vLsi), V(cur[1]), V(vP)))
    it.append(I(k.valu, "v_fmac_f32", V(vP + 1), V(vLsi), V(cur[0])))
    it.append(I(k.valu, "v_lshrrev_b32", V(vT + 8), 5, V(vLane)))
    it.append(I(k.valu, "v_lshlrev_b32", V(vTw), 3, V(vMr)))
    it.append(I(k.valu, "v_lshl_add_u32", V(vTw), V(vT + 8), 5, V(vTw)))
    it.append(I(k.valu, "v_add_u32", V(vTw), sReg, V(vTw)))
    it.append(I(k.valu, "v_bfe_u32", V(vT + 9), V(vLane), 2, 2))
    it.append(I(k.valu, "v_lshl_add_u32", V(vTr), V(vT + 8), 3, V(vT + 9)))
    it.append(I(k.valu, "v_lshlrev_b32", V(vTr), 6, V(vTr)))
    it.append(I(k.valu, "v_and_b32", V(vT + 9), 1, V(vLane)))
    it.append(I(k.valu, "v_lshl_add_u32", V(vTr), V(vT + 9), 5, V(vTr)))
    it.append(I(k.valu, "v_bfe_u32", V(vT + 9), V(vLane), 1, 1))
    it.append(I(k.valu, "v_lshl_add_u32", V(vTr), V(vT + 9), 3, V(vTr)))
    it.append(I(k.valu, "v_bfe_u32", V(vT + 9), V(vLane), 4, 1))
    it.append(I(k.valu, "v_lshl_add_u32", V(vTr), V(vT + 9), 4, V(vTr)))
    it.append(I(k.valu, "v_add_u32", V(vTr), sReg, V(vTr)))
    cur = (vP, vP + 1)
    for r in range(16):
        it.append(I(k.valu, "v_fmac_f32", V(Ure + r), V(vLr), V(cur[0])))
        it.append(I(k.valu, "v_fmac_f32", V(Uim + r), V(vLr), V(cur[1])))
        it.append(I(k.valu, "v_fmac_f32", V(Ure + r), V(vNLi), V(cur[1])))
        it.append(I(k.valu, "v_fmac_f32", V(Uim + r), V(vLi), V(cur[0])))
        cur = (Ure + r, Uim + r)
    for r in range(0, 16, 2):
        it.append(I(k.valu, "v_cvt_pk_bf16_f32", V(vE + r // 2), V(Ure + r), V(Ure + r + 1)))
    for r in range(0, 16, 2):
        it.append(I(k.valu, "v_cvt_pk_bf16_f32", V(vE + 8 + r // 2), "-" + V(Uim + r), "-" + V(Uim + r + 1)))
    for c in range(2):
        def wr(c=c):
            if c == 1:
                k.wait_lds(tk["tr"])
            k.ds_write("ds_write_b128", V(vTw), V(vE + 8 * c, 4), 0)
            tk["tw"] = k.ds_write("ds_write_b128", V(vTw), V(vE + 8 * c + 4, 4), 16)
        it.append((4, wr))

        def rd(c=c):
            k.wait_lds(tk["tw"])
            for s in range(2):
                for q in range(2):
                    tk["tr"] = k.ds_read("ds_read_b64_tr_b16", V(accU + 8 * c + 4 * s + 2 * q, 2), V(vTr),
                                         s * 1024 + q * 256)
        it.append((4, rd))

        def stv(c=c):
            for s in range(2):
                tok = k.buf_store("buffer_store_dwordx4", V(accU + 8 * c + 4 * s, 4), V(vA2w), srdWS,
                                  sPosS[2 * c + s], flags="sc1")
            if c == 1:
                pending.append((tok, lambda: publish(progress)))
        it.append((3, stv))
    return it


pool = [A(112 + 4 * i, 4) for i in range(36)]
vA2r = va.get(2)
vB2r = va.get(2)
vPollA = va.get()
vPoll = va.get()
vBfA = va.get()
ORD = list(range(14, 21)) + list(range(0, 14)) + list(range(21, 42))
PART = ["F0"] * 7 + ["S"] * 14 + ["F1"] * 7 + ["F2"] * 7 + ["F3"] * 7
PROG = {"F0": 1, "S": 2, "F1": 3, "F2": 4, "F3": 5}
fragA, fragB = {}, {}


def p2_setup():
    it = []
    it.append(I(k.salu, "s_mul_i32", "s9", sRb64, 168))
    it.append(I(k.salu, "s_mul_i32", "s10", sW, 42))
    it.append(I(k.salu, "s_add_u32", "s9", "s9", "s10"))
    it.append(I(k.salu, "s_lshl_b32", "s9", "s9", 11))
    it.append(I(k.salu, "s_lshr_b32", "s11", sW, 1))
    it.append(I(k.salu, "s_lshl_b32", "s11", "s11", 10))
    it.append(I(k.salu, "s_add_u32", "s9", "s9", "s11"))
    it.append(I(k.valu, "v_add_u32", V(vA2r), "s9", V(vL16)))
    it.append(I(k.valu, "v_xor_b32", V(vA2r + 1), 1024, V(vA2r)))
    it.append(I(k.salu, "s_mul_i32", "s9", sCb, 168))
    it.append(I(k.salu, "s_add_u32", "s9", "s9", "s10"))
    it.append(I(k.salu, "s_lshl_b32", "s9", "s9", 11))
    it.append(I(k.salu, "s_and_b32", "s11", sW, 1))
    it.append(I(k.salu, "s_lshl_b32", "s11", "s11", 10))
    it.append(I(k.salu, "s_add_u32", "s9", "s9", "s11"))
    it.append(I(k.salu, "s_add_u32", "s9", "s9", WS_B2))
    it.append(I(k.valu, "v_add_u32", V(vB2r), "s9", V(vL16)))
    it.append(I(k.valu, "v_xor_b32", V(vB2r + 1), 1024, V(vB2r)))
    it.append(I(k.salu, "s_lshl_b32", "s9", sRb64, 7))
    it.append(I(k.salu, "s_add_u32", "s9", "s9", WS_FLG))
    it.append(I(k.valu, "v_and_b32", V(vPollA), 31, V(vLane)))
    it.append(I(k.valu, "v_lshl_add_u32", V(vPollA), V(vPollA), 2, "s9"))
    it.append(I(k.salu, "s_lshl_b32", "s9", sCb, 2))
    it.append(I(k.salu, "s_add_u32", "s9", "s9", sW))
    it.append(I(k.salu, "s_lshl_b32", "s9", "s9", 7))
    it.append(I(k.salu, "s_add_u32", "s9", "s9", WS_BFL))
    it.append(I(k.valu, "v_mov_b32", V(vBfA), "s9"))
    return [(1, lambda it=it: [f() for c, f in it])] if False else it


def poll_load(o, addr=None):
    o.buf_load("buffer_load_dword", V(vPoll), V(vPollA if addr is None else addr), srdWS, 0, flags="sc1")


def mk_check(part):
    need = PROG[part]
    mask = sMaskS if part == "S" else sMaskF

    def chk(o):
        o.salu("s_add_u32", "s13", sTag, need)
        o.valu("v_subrev_u32", V(vT + 11), "s13", V(vPoll))
        o.valu("v_cmp_le_u32", "vcc", 8 - need, V(vT + 11))
        o.nop(1)
        o.raw(f"s_and_b64 vcc, vcc, {mask}")
    return chk


def bf_check(o):
    o.valu("v_cmp_ne_u32", "vcc", sTag, V(vPoll))
    o.nop(1)
    o.raw("s_cmp_lg_u64 vcc, 0")


last_so = [None]


def load_frag(kind, j, i):
    if not pool:
        return False
    reg = pool.pop(0)
    pos = ORD[j]
    so = (pos // 2) * 4096
    if last_so[0] != so:
        k.salu("s_mov_b32", sSo, so)
        last_so[0] = so
    base = vA2r if kind == "A" else vB2r
    k.buf_load("buffer_load_dwordx4", reg, V(base + i), srdWS, sSo, offset=(pos & 1) * 2048, flags="sc1")
    (fragA if kind == "A" else fragB)[(j, i)] = reg
    return True


plan = []


def plan_B(j0, j1):
    for j in range(j0, j1):
        for i in range(2):
            plan.append(("B", j, i))


def plan_A(j0, j1):
    for j in range(j0, j1):
        for i in range(2):
            plan.append(("A", j, i))


def plan_step(maxn=1):
    n = 0
    while plan and n < maxn:
        e = plan[0]
        if e[0] in "AB":
            if not load_frag(*e):
                return
            n += 1
        elif e[0] == "POLL":
            poll_load(k)
            n += 1
        elif e[0] == "CHECK":
            spin_block(poll_load, mk_check(e[1]))
        elif e[0] == "STOP":
            return
        plan.pop(0)


def plan_go():
    assert plan[0][0] == "STOP"
    plan.pop(0)


def after_xread(c):
    def f():
        k.wait_lds(tokXr[(c, 3)])
        last_so[0] = None
        if c == 0:
            dma_S(6)
        else:
            dma_F(0, c - 1)
        if c == 6:
            dma_F(0, 6)
            dma_F(1, 0)
            dma_F(1, 1)
    return f


for c in range(7):
    fill.setdefault(2 * (4 * c + 3) + 0, []).append(after_xread(c))
for c in range(2, 7):
    n = 56 + 4 * (c - 1) + 4
    post_barrier.setdefault(n, []).append(lambda c=c: (last_so.__setitem__(0, None), dma_F(1, c)))


def flip_sub():
    for r in range(4):
        k.valu("v_xor_b32", V(vFr + r), 64, V(vFr + r))


spread(ssm_s1(), 29, 33)
pre_barrier.setdefault(36, []).append(lambda: k.wait_lds(tk["agg"]))
spread(ssm_s2(), 35, 42)
spread(ssm_scale(), 42, 50)
spread(p2_setup(), 50, 56)
spread(ffn_epilogue(accA, 0, PROG["F0"]), 57, 74)
fill.setdefault(2 * 70, []).append(lambda: agg_load(k))
spread(ssm_s3b(), 76, 78)
pre_barrier.setdefault(80, []).append(lambda: k.wait_lds(tk["part"]))
fill.setdefault(2 * 78, []).append(lambda: poll_load(k, vBfA))
spread(ssm_s4(PROG["S"]), 79, 95)
fill.setdefault(2 * 84, []).append(lambda: spin_block(lambda o: poll_load(o, vBfA), bf_check))
spread(ffn_epilogue(accB, 1, PROG["F1"]), 95, 112)
spread(ffn_epilogue(accA, 2, PROG["F2"]), 113, 134)

plan_B(0, 14)
plan += [("POLL",)]
plan_B(14, 18)
plan += [("CHECK", "F0")]
plan_A(0, 7)
plan += [("POLL",)]
plan_B(18, 21)
plan += [("CHECK", "S")]
plan_A(7, 14)
plan += [("POLL",)]
plan_A(14, 21)
plan_B(21, 28)
plan += [("CHECK", "F1")]
plan_A(21, 28)
plan += [("POLL",)]
plan_B(28, 35)
plan += [("CHECK", "F2")]
plan_A(28, 35)
plan += [("POLL",)]
plan_B(35, 42)
plan += [("CHECK", "F3")]
plan_A(35, 42)

for n in range(85, 140):
    fill.setdefault(2 * n + 1, []).append(lambda: plan_step(1))


def release_ssm():
    for i in range(0, 32, 4):
        pass


sync_for(0)
for n in (0, 1):
    for f in reads_for(n):
        f()
STAMP()
for n in range(140):
    ps, kk = divmod(n, 28)
    c, ks = divmod(kk, 4)
    if kk == 0 and ps:
        STAMP()
    nn = n + 2
    rd = []
    if nn < 140:
        if nn % 4 == 0 and nn < 112 + 4:
            sync_for(nn)
            run_pending()
        if nn % 28 == 0 and nn >= 56:
            flip_sub()
        rd = reads_for(nn)
    acc = [accU, accA, accB, accA, accB][ps]
    x = A(XA + 16 * c + 4 * ks, 4)
    h = (len(rd) + 1) // 2
    for m in range(2):
        d = V(acc + 16 * m, 16)
        w = V(wbuf(n, m), 4)
        cc = 0 if kk == 0 else d
        if ps == 0:
            k.mfma(d, x, w, cc)
        else:
            k.mfma(d, w, x, cc)
        for f in (rd[:h] if m == 0 else rd[h:]):
            f()
        for f in fill.pop(2 * n + m, []):
            f()
    if n == 29:
        pass
    if n == 96:
        for i in range(0, 32, 4):
            if (accU + i) % 4 == 0:
                pool.append(V(accU + i, 4))
    run_pending(force=(n == 106))
assert not fill, fill.keys()
assert not pre_barrier and not post_barrier

STAMP()
k.barrier()
for i in range(0, 24, 4):
    pool.append(V(vW + i, 4))
for i in range(48, 64, 4):
    pool.append(A(i, 4))
accb = {0: V(accA, 16), 1: A(0, 16), 2: A(16, 16), 3: A(32, 16)}
acca = {0: V(accA + 16, 16), 1: A(64, 16), 2: A(80, 16), 3: A(96, 16)}
epi3 = [f for c, f in ffn_epilogue(accB, 3, PROG["F3"])]

for r_, n_ in ((voffX, 4), (voffS, 2), (vXr, 4), (vSr, 8), (voffF, 4), (vFr, 4), (vE, 16), (vP, 2), (vAgA, 2),
               (vAgD, 8), (vMw, 1), (vMr, 2), (vTw, 1), (vTr, 1), (vBfA, 1), (vLr, 1), (vLi, 1), (vNLi, 1),
               (vCr, 1), (vCi, 1), (vL16r, 1), (vL16i, 1), (vL128r, 1), (vL128i, 1), (vL256r, 1), (vL256i, 1),
               (vLsr, 1), (vLsi, 1), (vSeg, 1)):
    va.put(r_, n_)
vRw = va.get()
vRr = va.get(3)
vG = va.get(16, 4)
vXd = va.get(16)
vOutA = va.get()
vDs = va.get()
vGa = va.get()
vGd = va.get(2, 2)


def fin_setup():
    it = []
    it.append(I(k.valu, "v_add_u32", V(vRw), sReg, V(vL16)))
    for t in range(1, 4):
        it.append(I(k.salu, "s_xor_b32", "s9", sW, t))
        it.append(I(k.salu, "s_mul_i32", "s9", "s9", REG))
        it.append(I(k.valu, "v_add_u32", V(vRr + t - 1), "s9", V(vL16)))
    it.append(I(k.salu, "s_lshl_b32", "s10", sRb64, 6))
    it.append(I(k.salu, "s_lshr_b32", "s9", sW, 1))
    it.append(I(k.salu, "s_lshl_b32", "s9", "s9", 5))
    it.append(I(k.salu, "s_add_u32", "s10", "s10", "s9"))
    it.append(I(k.salu, "s_lshl_b32", "s11", sCb, 6))
    it.append(I(k.salu, "s_and_b32", "s9", sW, 1))
    it.append(I(k.salu, "s_lshl_b32", "s9", "s9", 5))
    it.append(I(k.salu, "s_add_u32", "s11", "s11", "s9"))
    it.append(I(k.valu, "v_and_b32", V(vT + 4), 31, V(vLane)))
    it.append(I(k.valu, "v_add_u32", V(vT + 5), "s11", V(vT + 4)))
    it.append(I(k.valu, "v_lshlrev_b32", V(vT + 6), 1, V(vT + 5)))
    it.append(I(k.vm_other, f"global_load_ushort {V(vDs)}, {V(vT+6)}, s[{pDsk}:{pDsk+1}]", V(vDs), [V(vT + 6)]))
    it.append(I(k.valu, "v_add_u32", V(vGa), "s10", V(vT + 4)))
    it.append(I(k.valu, "v_lshlrev_b32", V(vGa), 3, V(vGa)))
    it.append(I(k.valu, "v_add_u32", V(vGa), WS_G, V(vGa)))
    it.append((1, lambda: g_load(k)))
    it.append(I(k.valu, "v_lshrrev_b32", V(vT + 4), 5, V(vLane)))
    it.append(I(k.valu, "v_lshl_add_u32", V(vT + 4), V(vT + 4), 4, "s10"))
    it.append(I(k.valu, "v_mul_u32_u24", V(vT + 4), 448, V(vT + 4)))
    it.append(I(k.valu, "v_add_u32", V(vT + 4), V(vT + 4), V(vT + 5)))
    it.append(I(k.valu, "v_lshlrev_b32", V(vOutA), 2, V(vT + 4)))
    it.append(I(k.valu, "v_lshlrev_b32", V(vT + 4), 1, V(vT + 4)))
    for r in range(16):
        def ld(r=r):
            if r % 4 == 0:
                k.salu("s_movk_i32", sSo2, r * 896)
            k.buf_load("buffer_load_ushort", V(vXd + r), V(vT + 4), srdX, sSo2, offset=(r % 4) * 896)
        it.append((1, ld))
    return [f for c, f in it]


def g_load(o):
    o.buf_load("buffer_load_dwordx2", V(vGd, 2), V(vGa), srdWS, 0, flags="sc1")


def g_check(o):
    o.valu("v_cmp_ne_u32", "vcc", sTag, V(vGd + 1))
    o.nop(1)
    o.raw("s_cmp_lg_u64 vcc, 0")


def fin_mid():
    it = []
    it.append(lambda: spin_block(g_load, g_check))
    OFFG = 36864

    def x():
        k.valu("v_and_b32", V(vT + 4), 31, V(vLane))
        k.valu("v_lshl_add_u32", V(vT + 4), V(vT + 4), 2, sReg)
        t = k.ds_write("ds_write_b32", V(vT + 4), V(vGd), OFFG)
        k.valu("v_lshrrev_b32", V(vT + 5), 5, V(vLane))
        k.valu("v_lshl_add_u32", V(vT + 5), V(vT + 5), 6, sReg)
        k.wait_lds(t)
        for i in range(4):
            k.ds_read("ds_read_b128", V(vG + 4 * i, 4), V(vT + 5), OFFG + 16 * i)
    it.append(x)
    it.append(lambda: k.valu("v_lshlrev_b32", V(vDs), 16, V(vDs)))
    for r in range(16):
        it.append(lambda r=r: k.valu("v_lshlrev_b32", V(vXd + r), 16, V(vXd + r)))
        it.append(lambda r=r: k.valu("v_mul_f32", V(vXd + r), V(vXd + r), V(vDs)))
        it.append(lambda r=r: k.valu("v_cvt_pk_bf16_f32", V(vXd + r), 0, V(vXd + r)))
    return it


def red_write(acc, t, base):
    r0 = int(acc[t][2:].split(":")[0])
    return [lambda i=i: k.ds_write("ds_write_b128", V(vRw), A(r0 + 4 * i, 4), base + (t - 1) * 4096 + i * 1024)
            for i in range(4)]


side = list(epi3)
side_after = {}
side_after[8] = fin_setup()
side_after[21] = red_write(acca, 1, 0) + red_write(acca, 2, 0) + red_write(acca, 3, 0)
side_after[27] = fin_mid()
seen = set()
for j in range(42):
    part = PART[j]
    acc = acca if part == "S" else accb
    while any((j, i) not in fragA or (j, i) not in fragB for i in range(2)):
        before = len(plan)
        plan_step(1)
        assert len(plan) < before, (j, "deadlock in plan", plan[:3])
    for t in (1, 2, 3, 0):
        i, jj = t >> 1, t & 1
        key = (part == "S", t)
        cc = acc[t] if key in seen else 0
        seen.add(key)
        k.mfma(acc[t], fragA[(j, i)], fragB[(j, jj)], cc)
        if t == 3:
            pool.append(fragA[(j, 1)])
            pool.append(fragB[(j, 1)])
        if t == 0:
            pool.append(fragA[(j, 0)])
            pool.append(fragB[(j, 0)])
        plan_step(2)
        for _ in range(4):
            if side:
                side.pop(0)()
        run_pending()
    if j == 6:
        while side:
            side.pop(0)()
        for i in range(0, 32, 4):
            pool.append(V(accB + i, 4))
    if j == 9:
        run_pending(force=True)
    side += side_after.pop(j, [])
while side:
    side.pop(0)()
assert not plan and not pending
STAMP()
for t in (1, 2, 3):
    for f in red_write(accb, t, 12288):
        f()
k.wait_all(vm=False)
k.barrier()
land = [accB, accB + 16, accU, accU + 16]
bo, ao = accA, accA + 16
for base, own in ((12288, bo), (0, ao)):
    for t in (1, 2, 3):
        dst = land[(t - 1 + (0 if base else 3)) % 4]
        for i in range(4):
            k.ds_read("ds_read_b128", V(dst + 4 * i, 4), V(vRr + t - 1), base + (t - 1) * 4096 + i * 1024)
    for t in (1, 2, 3):
        dst = land[(t - 1 + (0 if base else 3)) % 4]
        for r in range(16):
            k.valu("v_add_f32", V(own + r), V(own + r), V(dst + r))
for r in range(16):
    k.valu("v_cvt_pk_bf16_f32", V(bo + r), 0, V(bo + r))
    k.valu("v_sub_f32", V(vT + (r & 3)), 1.0, V(vG + r))
    k.valu("v_add_f32", V(ao + r), V(ao + r), V(vXd + r))
    k.valu("v_cvt_pk_bf16_f32", V(vT + (r & 3)), 0, V(vT + (r & 3)))
    k.valu("v_mul_f32", V(bo + r), V(bo + r), V(vT + (r & 3)))
    k.valu("v_cvt_pk_bf16_f32", V(bo + r), 0, V(bo + r))
    k.valu("v_fmac_f32", V(bo + r), V(vG + r), V(ao + r))
    if r % 2 == 0:
        k.salu("s_movk_i32", sSo2, r * 1792)
    k.buf_store("buffer_store_dword", V(bo + r), V(vOutA), srdOut, sSo2, offset=(r % 2) * 1792)
STAMP()


k.raw("s_endpgm")
main_hi = va.hi

k.reset()
k.label("L_HELPER")
vh = VAlloc(256, vT + 12)
k.raw("s_waitcnt lgkmcnt(0)")
k.salu("s_add_u32", "s12", S(pWs), WS_EPOCH)
k.salu("s_addc_u32", "s13", S(pWs + 1), 0)
k.raw(f"s_load_dword {sEp}, s[12:13], 0")
srd(srdWS, pWs, WS_SIZE)
srd(srdX, pX, 2048 * 896)
hCnt = vh.get()
k.salu("s_cmp_ge_u32", "s2", 28)
k.raw("s_cbranch_scc1 L_HG")
hcb, hq = "s80", "s81"
k.salu("s_lshr_b32", hcb, "s2", 2)
k.salu("s_and_b32", hq, "s2", 3)
srd(srdW, pW2, 1792 * 896)
k.salu("s_cmp_ge_u32", hq, 2)
srd_sel(srdS, pCre, pCim, 448 * 896)
hv = vh.get(2)
k.valu("v_bfe_u32", V(vT), V(vLane), 4, 1)
k.valu("v_lshlrev_b32", V(vT), 2, V(vT))
k.valu("v_and_b32", V(vT + 1), 7, V(vLane))
k.valu("v_xor_b32", V(vT), V(vT), V(vT + 1))
k.valu("v_lshlrev_b32", V(vT), 4, V(vT))
k.salu("s_lshl_b32", "s9", sW, 5)
k.valu("v_lshrrev_b32", V(vT + 1), 3, V(vLane))
k.valu("v_add_u32", V(vT + 1), "s9", V(vT + 1))
k.valu("v_mul_u32_u24", V(vT + 1), 896, V(vT + 1))
k.salu("s_lshl_b32", "s9", hcb, 7)
k.valu("v_add3_u32", V(hv), V(vT), V(vT + 1), "s9")
k.valu("v_add_u32", V(hv + 1), 8 * 896 - 1024, V(hv))
k.salu("s_mul_i32", "s10", hq, 7)
htok = {}
for j in range(7):
    k.salu("s_add_u32", "s9", "s10", j)
    k.salu("s_lshr_b32", "s11", "s9", 1)
    k.salu("s_lshl_b32", "s11", "s11", 7)
    k.salu("s_and_b32", "s9", "s9", 1)
    k.salu("s_lshl_b32", "s9", "s9", 4)
    k.salu("s_add_u32", "s9", "s9", "s11")
    k.salu("s_mul_i32", sSo, "s9", 896)
    k.salu("s_add_u32", "m0", sReg, 2048 * j)
    for i in range(2):
        htok[j] = k.dma(V(hv + i), srdW, sSo, offset=1024 * i)
hc = vh.get(28, 4)
hca = vh.get()
k.valu("v_and_b32", V(vT), 31, V(vLane))
k.salu("s_lshl_b32", "s9", hcb, 6)
k.valu("v_add_u32", V(vT), "s9", V(vT))
k.valu("v_mul_u32_u24", V(vT), 896, V(vT))
k.valu("v_lshrrev_b32", V(vT + 1), 5, V(vLane))
k.valu("v_lshl_add_u32", V(vT), V(vT + 1), 4, V(vT))
k.salu("s_and_b32", "s9", hq, 1)
k.salu("s_mul_i32", "s9", "s9", 448)
k.valu("v_add_u32", V(hca), "s9", V(vT))
k.salu("s_mul_i32", "s10", sW, 7)
for j in range(7):
    k.salu("s_add_u32", "s9", "s10", j)
    k.salu("s_lshr_b32", "s11", "s9", 1)
    k.salu("s_lshl_b32", "s11", "s11", 5)
    k.salu("s_and_b32", "s9", "s9", 1)
    k.salu("s_mul_i32", "s9", "s9", 32 * 896)
    k.salu("s_add_u32", sSo, "s9", "s11")
    k.buf_load("buffer_load_dwordx4", V(hc + 4 * j, 4), V(hca), srdS, sSo)
ho = vh.get()
k.salu("s_mul_i32", "s9", hcb, 168)
k.salu("s_mul_i32", "s11", hq, 42)
k.salu("s_add_u32", "s9", "s9", "s11")
k.salu("s_lshl_b32", "s9", "s9", 11)
k.salu("s_add_u32", "s9", "s9", WS_B2)
k.valu("v_add_u32", V(ho), "s9", V(vL16))
hr = vh.get(2)
k.valu("v_lshrrev_b32", V(vT), 5, V(vLane))
k.valu("v_bfe_u32", V(vT + 1), V(vLane), 2, 2)
k.valu("v_lshl_add_u32", V(vT), V(vT), 2, V(vT + 1))
k.valu("v_lshlrev_b32", V(vT), 7, V(vT))
k.valu("v_bfe_u32", V(vT + 1), V(vLane), 3, 1)
k.valu("v_lshl_add_u32", V(vT), V(vT + 1), 6, V(vT))
k.valu("v_bfe_u32", V(vT + 1), V(vLane), 4, 1)
k.valu("v_lshl_add_u32", V(vT), V(vT + 1), 5, V(vT))
k.valu("v_and_b32", V(vT + 1), 3, V(vLane))
k.valu("v_lshl_add_u32", V(vT), V(vT + 1), 3, V(vT))
k.valu("v_add_u32", V(hr), sReg, V(vT))
k.valu("v_xor_b32", V(hr + 1), 64, V(hr))
hb = vh.get(56, 4)
k.raw("s_waitcnt lgkmcnt(0)")
k.salu("s_mul_i32", "s10", sW, 7 * 2048)
k.salu("s_add_u32", "s10", "s10", 14 * 2048)
for j in range(7):
    k.wait_vm(htok[j])
    for dt in range(2):
        for q in range(2):
            k.ds_read("ds_read_b64_tr_b16", V(hb + 8 * j + 4 * dt + 2 * q, 2), V(hr + dt), 2048 * j + 1024 * q)
for j in range(7):
    k.salu("s_add_u32", sSo, "s10", 2048 * j)
    for dt in range(2):
        k.buf_store("buffer_store_dwordx4", V(hb + 8 * j + 4 * dt, 4), V(ho), srdWS, sSo, offset=1024 * dt,
                    flags="sc1")
k.salu("s_mul_i32", "s10", sW, 7 * 1024)
for j in range(7):
    k.salu("s_add_u32", sSo, "s10", 1024 * j)
    k.buf_store("buffer_store_dwordx4", V(hc + 4 * j, 4), V(ho), srdWS, sSo, flags="sc1")
k.salu("s_lshr_b32", sTag, sEp, 3)
k.salu("s_add_u32", sTag, sTag, 1)
k.salu("s_lshl_b32", sTag, sTag, 3)
k.salu("s_lshl_b32", "s9", "s2", 7)
k.salu("s_add_u32", "s9", "s9", WS_BFL)
k.valu("v_mov_b32", V(vT), sTag)
k.valu("v_mov_b32", V(vT + 1), "s9")
k.wait_all()
k.barrier()
k.salu("s_cmp_eq_u32", sW, 0)
k.raw("s_cbranch_scc0 L_HG")
k.raw("s_mov_b64 exec, 1")
k.buf_store("buffer_store_dword", V(vT), V(vT + 1), srdWS, 0, flags="sc1")
k.raw("s_mov_b64 exec, -1")
k.label("L_HG")
k.reset()
k.raw("s_waitcnt lgkmcnt(0)")
k.salu("s_lshr_b32", sTag, sEp, 3)
k.salu("s_add_u32", sTag, sTag, 1)
k.salu("s_lshl_b32", sTag, sTag, 3)
vh = VAlloc(256, hCnt + 1)
gw = vh.get(28, 4)
gx = vh.get(56, 4)
ga = vh.get()
grow = vh.get()
k.valu("v_and_b32", V(vT), 7, V(vLane))
k.valu("v_lshlrev_b32", V(vT), 4, V(vT))
for i in range(7):
    k.vm_other(f"global_load_dwordx4 {V(gw+4*i,4)}, {V(vT)}, s[{pGw}:{pGw+1}] offset:{128*i}", V(gw + 4 * i, 4),
               [V(vT)])
k.salu("s_lshl_b32", "s9", "s2", 6)
k.salu("s_lshl_b32", "s10", sW, 4)
k.salu("s_add_u32", "s9", "s9", "s10")
k.valu("v_lshrrev_b32", V(grow), 3, V(vLane))
k.valu("v_add_u32", V(grow), "s9", V(grow))
k.valu("v_mul_u32_u24", V(ga), 896, V(grow))
k.valu("v_add_u32", V(ga), V(ga), V(vT))
k.salu("s_movk_i32", sSo, 8 * 896)
for ps in range(2):
    for i in range(7):
        k.buf_load("buffer_load_dwordx4", V(gx + 28 * ps + 4 * i, 4), V(ga), srdX, sSo if ps else 0, offset=128 * i)
k.raw("s_waitcnt vmcnt(0)")
k.vm_q = []
gl = vh.get(28)
for i in range(28):
    k.valu("v_lshlrev_b32", V(gl + i), 16, V(gw + i))
    k.valu("v_and_b32", V(gw + i), 0xFFFF0000, V(gw + i))
gs = vh.get(4, 2)
for ps in range(2):
    s0, s1 = gs + 2 * ps, gs + 2 * ps + 1
    k.valu("v_mov_b32", V(s0), 0)
    k.valu("v_mov_b32", V(s1), 0)
    for i in range(28):
        xr = gx + 28 * ps + i
        a, b = vT + 2 * (i & 1), vT + 2 * (i & 1) + 1
        k.valu("v_lshlrev_b32", V(a), 16, V(xr))
        k.valu("v_and_b32", V(b), 0xFFFF0000, V(xr))
        k.valu("v_mul_f32", V(a), V(a), V(gl + i))
        k.valu("v_mul_f32", V(b), V(b), V(gw + i))
        k.valu("v_cvt_pk_bf16_f32", V(a), 0, V(a))
        k.valu("v_cvt_pk_bf16_f32", V(b), 0, V(b))
        k.valu("v_add_f32", V(s0), V(s0), V(a))
        k.valu("v_add_f32", V(s1), V(s1), V(b))
    k.valu("v_add_f32", V(s0), V(s0), V(s1))
    k.valu("v_add_f32_dpp", V(s0), V(s0), V(s0), mods="quad_perm:[1,0,3,2] row_mask:0xf bank_mask:0xf")
    k.valu("v_add_f32_dpp", V(s0), V(s0), V(s0), mods="quad_perm:[2,3,0,1] row_mask:0xf bank_mask:0xf")
    k.valu("v_add_f32_dpp", V(s0), V(s0), V(s0), mods="row_half_mirror row_mask:0xf bank_mask:0xf")
    k.valu("v_cvt_pk_bf16_f32", V(s0), 0, V(s0))
    k.valu("v_mul_f32", V(s0), -LOG2E, V(s0))
    k.valu("v_exp_f32", V(s0), V(s0))
    k.valu("v_add_f32", V(s0), 1.0, V(s0))
    k.valu("v_rcp_f32", V(s0), V(s0))
    k.valu("v_cvt_pk_bf16_f32", V(s0), 0, V(s0))
    k.valu("v_mov_b32", V(s1), sTag)
k.valu("v_lshlrev_b32", V(ga), 3, V(grow))
k.valu("v_add_u32", V(ga), WS_G, V(ga))
k.salu("s_mov_b32", "s10", 0x01010101)
k.salu("s_mov_b32", "s11", 0x01010101)
k.raw("s_mov_b64 exec, s[10:11]")
assert gs % 2 == 0
for ps in range(2):
    k.buf_store("buffer_store_dwordx2", V(gs + 2 * ps, 2), V(ga), srdWS, 0, offset=64 * ps, flags="sc1")
k.raw("s_mov_b64 exec, -1")
k.salu("s_cmp_lg_u32", "s2", 31)
k.raw("s_cbranch_scc1 L_END")
k.salu("s_cmp_lg_u32", sW, 0)
k.raw("s_cbranch_scc1 L_END")
ef = vh.get(16, 4)
eg = vh.get(4, 2)
ea, eb, ec = vh.get(), vh.get(), vh.get()
k.valu("v_add_u32", V(ea), WS_FLG, V(vL16))
k.valu("v_lshlrev_b32", V(eb), 7, V(vLane))
k.valu("v_add_u32", V(eb), WS_G, V(eb))
k.salu("s_movk_i32", sSo, 8192)
k.salu("s_add_u32", "s12", sTag, 1)
k.salu("s_mov_b32", "s10", 0x77777777)
k.salu("s_mov_b32", "s11", 0x77777777)
k.salu("s_mov_b32", sSpin, 0)
k.wait_all()
k.label("EP_LOOP")
k.raw("s_sleep 8")
for i in range(4):
    k.buf_load("buffer_load_dwordx4", V(ef + 4 * i, 4), V(ea), srdWS, 0, offset=1024 * i, flags="sc1")
for i in range(2):
    k.buf_load("buffer_load_dwordx2", V(eg + 2 * i, 2), V(eb), srdWS, sSo if i else 0, flags="sc1")
k.wait_all()
for i in range(16):
    k.valu("v_subrev_u32", V(ef + i), "s12", V(ef + i))
for h in range(2):
    k.valu("v_max_u32", V(ef + 2 * h), V(ef + 2 * h), V(ef + 2 * h + 1))
    for i in range(1, 4):
        k.valu("v_max3_u32", V(ef + 2 * h), V(ef + 2 * h), V(ef + 4 * i + 2 * h), V(ef + 4 * i + 2 * h + 1))
k.valu("v_cmp_le_u32", "s[14:15]", 7, V(ef + 2))
k.valu("v_cmp_le_u32", "vcc", 7, V(ef))
k.nop(1)
k.raw("s_and_b64 s[14:15], s[14:15], s[10:11]")
k.raw("s_or_b64 s[14:15], s[14:15], vcc")
k.valu("v_cmp_ne_u32", "vcc", sTag, V(eg + 1))
k.nop(1)
k.raw("s_or_b64 s[14:15], s[14:15], vcc")
k.valu("v_cmp_ne_u32", "vcc", sTag, V(eg + 3))
k.nop(1)
k.raw("s_or_b64 s[14:15], s[14:15], vcc")
k.raw("s_cbranch_scc0 EP_DONE")
k.salu("s_add_u32", sSpin, sSpin, 1)
k.salu("s_cmp_lt_u32", sSpin, 0x40000)
k.raw("s_cbranch_scc1 EP_LOOP")
k.label("EP_DONE")
k.valu("v_mov_b32", V(vT), sTag)
k.valu("v_mov_b32", V(vT + 1), WS_EPOCH)
k.raw("s_mov_b64 exec, 1")
k.buf_store("buffer_store_dword", V(vT), V(vT + 1), srdWS, 0, flags="sc1")
k.label("L_END")
k.raw("s_endpgm")

hdr = open("cdna_kernels/" + NAME + ".s.ref").read().split("; Override launch")[0]
out = hdr
out += "; @launch grid=(256,1,1) block=(256,1,1) lds=163840\n"
out += '.amdgcn_target "amdgcn-amd-amdhsa--gfx950"\n.text\n'
out += f".globl {NAME}_kernel\n.p2align 8\n.type {NAME}_kernel,@function\n"
out += k.text()
out += "".join(k.tail)
out += "    s_endpgm\n"
out += ".fill (33024 - (. - PCBASE) + 3) / 4 * ((33024 - (. - PCBASE)) > 0) * -1, 4, 0xBF810000\n" if False else ""
out += ".if (. - PCBASE) < 33024\n.fill (33024 - (. - PCBASE)) / 4 + 1, 4, 0xBF810000\n.endif\n"
out += f"""
.section .rodata,"a"
.p2align 6
.amdhsa_kernel {NAME}_kernel
  .amdhsa_next_free_vgpr 512
  .amdhsa_next_free_sgpr 102
  .amdhsa_accum_offset 256
  .amdhsa_group_segment_fixed_size 0
  .amdhsa_kernarg_size 136
  .amdhsa_user_sgpr_count 2
  .amdhsa_user_sgpr_kernarg_segment_ptr 1
  .amdhsa_system_sgpr_workgroup_id_x 1
  .amdhsa_float_denorm_mode_32 3
.end_amdhsa_kernel
"""
open(sys.argv[1], "w").write(out)
print("vgpr hi main", main_hi, "instr", sum(k.count.values()), "nops", k.count.get("s_nop", 0),
      "waits", k.count.get("s_waitcnt", 0), "stamps", nstamp[0], file=sys.stderr)
```
